```python
import torch

def _softmax(x, axis=-1):
    return torch.softmax(x, dim=axis)
def _gelu(x):
    return torch.nn.functional.gelu(x, approximate="tanh")
def _silu(x):
    return torch.nn.functional.silu(x)
def _sigmoid(x):
    return torch.sigmoid(x)
def _layernorm(x, axis=-1, eps=1e-5):
    m = x.mean(dim=axis, keepdim=True)
    v = x.var(dim=axis, keepdim=True, unbiased=False)
    return (x - m) / torch.sqrt(v + eps)
def _scatter_add(tgt, idx, src, axis=0):
    return tgt.clone().index_add_(axis, idx, src)
def _segment_sum(src, seg, n):
    out = torch.zeros((n,) + src.shape[1:], dtype=src.dtype)
    return out.index_add_(0, seg, src)
def _pad(x, pw):
    flat = tuple(v for pair in reversed(pw) for v in pair)
    return torch.nn.functional.pad(x, flat)

kernel_name = 'parallel_sum__ssm_conv_s5__dense_activation_squared_relu__prompt'

def setup_inputs():

    _w = (lambda a: (lambda t: t.to(torch.bfloat16) if t.is_floating_point() else t)(torch.as_tensor(a)))
    def _A_setup():
        B, S, D = 1, 2048, 512
        P = D
        Lambda_re = -0.5 * (lambda _x: torch.exp(torch.as_tensor(_x)))((lambda *s: torch.randn(*s, dtype=torch.bfloat16) * 0.8)(P))
        Lambda_im = (lambda *s: torch.randn(*s, dtype=torch.bfloat16) * 0.8)(P) * 1.0
        B_re = (lambda *s: torch.randn(*s, dtype=torch.bfloat16) * 1.6)(P, D) * (D ** -0.5)
        B_im = (lambda *s: torch.randn(*s, dtype=torch.bfloat16) * 1.6)(P, D) * (D ** -0.5)
        C_re = (lambda *s: torch.randn(*s, dtype=torch.bfloat16) * 1.6)(D, P) * (P ** -0.5)
        C_im = (lambda *s: torch.randn(*s, dtype=torch.bfloat16) * 1.6)(D, P) * (P ** -0.5)
        log_dt = (lambda *s: torch.randn(*s, dtype=torch.bfloat16) * 0.8)(P) * 0.3 - 2.0
        Dskip = (lambda *s: torch.randn(*s, dtype=torch.bfloat16) * 0.4)(D)
        return {
            "x": _w((lambda *s: torch.randn(*s, dtype=torch.bfloat16) * 0.05)(B, S, D)),
            "Lambda_re": _w(Lambda_re),
            "Lambda_im": _w(Lambda_im),
            "B_re": _w(B_re),
            "B_im": _w(B_im),
            "C_re": _w(C_re),
            "C_im": _w(C_im),
            "log_dt": _w(log_dt),
            "Dskip": _w(Dskip),
        }
    _A_in = _A_setup()

    def _B_setup():
        B, S, D, F = 1, 2048, 512, 1792
        return {
            "x": _w((lambda *s: torch.randn(*s, dtype=torch.bfloat16) * 0.05)(B, S, D)),
            "w1": _w((lambda *s: torch.randn(*s, dtype=torch.bfloat16) * 0.05)(D, F)),
            "b1": _w((lambda *s: torch.randn(*s, dtype=torch.bfloat16) * 0.2)(F)),
            "w2": _w((lambda *s: torch.randn(*s, dtype=torch.bfloat16) * 0.05)(F, D)),
            "b2": _w((lambda *s: torch.randn(*s, dtype=torch.bfloat16) * 1.6)(D)),
        }
    _B_in = _B_setup()

    return {
        "A_x": _A_in["x"],
        "A_Lambda_re": _A_in["Lambda_re"],
        "A_Lambda_im": _A_in["Lambda_im"],
        "A_B_re": _A_in["B_re"],
        "A_B_im": _A_in["B_im"],
        "A_C_re": _A_in["C_re"],
        "A_C_im": _A_in["C_im"],
        "A_log_dt": _A_in["log_dt"],
        "A_Dskip": _A_in["Dskip"],
        "B_x": _B_in["x"],
        "B_w1": _B_in["w1"],
        "B_b1": _B_in["b1"],
        "B_w2": _B_in["w2"],
        "B_b2": _B_in["b2"],
    }

def reference(A_x, A_Lambda_re, A_Lambda_im, A_B_re, A_B_im, A_C_re, A_C_im, A_log_dt, A_Dskip, B_x, B_w1, B_b1, B_w2, B_b2):
    def _A_ref(x, Lambda_re, Lambda_im, B_re, B_im, C_re, C_im, log_dt, Dskip):
        Bsz, L, H = x.shape
        Lam = Lambda_re + 1j * Lambda_im
        Bmat = B_re + 1j * B_im
        Cmat = C_re + 1j * C_im
        dt = torch.exp(log_dt)
        Lam_bar = torch.exp(dt * Lam)
        B_bar = ((Lam_bar - 1.0) / Lam)[:, None] * Bmat
        Bu = torch.einsum("bld,pd->blp", x + 0j, B_bar)
        h = torch.zeros_like(Bu[:, 0, :])
        hs = []
        for t in range(L):
            h = Lam_bar[None, :] * h + Bu[:, t, :]
            hs.append(h)
        hseq = torch.stack(hs, 1)
        y = 2.0 * torch.einsum("blp,dp->bld", hseq, Cmat).real + x * Dskip[None, None, :]
        return y

    def _B_ref(x, w1, b1, w2, b2):
        h = torch.einsum("bsd,df->bsf", x, w1) + b1
        zero = torch.zeros_like(h)
        r = torch.where(h > zero, h, zero)
        h = r * r
        out = torch.einsum("bsf,fd->bsd", h, w2) + b2
        return out

    x = A_x
    xn = _layernorm(x, axis=-1)
    return x + _A_ref(xn, A_Lambda_re, A_Lambda_im, A_B_re, A_B_im, A_C_re, A_C_im, A_log_dt, A_Dskip) + _B_ref(xn, B_w1, B_b1, B_w2, B_b2)
```

```python
import re
class Asm:
    def __init__(self):
        self.L=[]
    def __call__(self, s):
        for ln in s.strip().split("\n"):
            ln=ln.strip()
            if ln: self.L.append(ln)
    def ext(self, other): self.L += other.L

def regs(tok):
    tok=tok.strip().lstrip('-').strip('|')
    m=re.fullmatch(r'([vas])\[(\d+):(\d+)\]',tok)
    if m: return {(m.group(1),i) for i in range(int(m.group(2)),int(m.group(3))+1)}
    m=re.fullmatch(r'([vas])(\d+)',tok)
    if m: return {(m.group(1),int(m.group(2)))}
    if tok=='vcc': return {('s','vcc')}
    if tok=='m0': return {('s','m0')}
    if tok=='exec': return {('s','exec')}
    return set()

TRANS=('v_exp_','v_log_','v_rcp_','v_rsq_','v_sqrt_','v_sin_','v_cos_')
def parse(ln):
    ln=ln.split(';')[0].strip()
    if not ln or ln.endswith(':'): return None
    p=ln.split(None,1); op=p[0]
    ops=[o.strip() for o in p[1].split(',')] if len(p)>1 else []
    if ops: ops[-1]=ops[-1].split()[0] if ops[-1] else ops[-1]
    d=dict(op=op,w=set(),r=set(),kind='s',dpp=('row_' in ln or 'quad_perm' in ln),ab=set(),lds=(' lds' in ln))
    R=[regs(o) for o in ops]
    if op.startswith('v_mfma'):
        d['kind']='mfma'; d['w']=R[0]; d['r']=R[1]|R[2]|R[3]; d['ab']=R[1]|R[2]; d['c']=R[3]
    elif op.startswith('v_'):
        d['kind']='valu'; d['w']=set(R[0]); d['r']=set().union(*R[1:]) if len(R)>1 else set()
        if op.startswith(('v_fmac','v_dot2c','v_swap','v_permlane')) or d['dpp']: d['r']|=R[0]
        if op.startswith(('v_swap','v_permlane')): d['w']|=R[1]
        if op.startswith('v_cndmask') and len(ops)==3: d['r']|={('s','vcc')}
        if op.startswith('v_cmpx'): d['w']|={('s','exec')}
        d['trans']=op.startswith(TRANS)
    elif op.startswith(('buffer_','global_')):
        d['kind']='vmem'
        if 'load' in op and not d['lds']: d['w']=R[0]; d['r']=set().union(*R[1:])
        else: d['r']=set().union(*R)
        if 'store' in op and ('x4' in op or 'x3' in op): d['sd']=R[0] if op.startswith('buffer') else R[1]
    elif op.startswith('ds_'):
        d['kind']='ds'
        if 'read' in op or 'permute' in op: d['w']=R[0]; d['r']=set().union(*R[1:])
        else: d['r']=set().union(*R)
        if 'write_b128' in op: d['sd']=R[1]
    elif op.startswith('s_') and ops and not op.startswith(('s_cmp','s_waitcnt','s_nop','s_cbranch','s_branch','s_barrier','s_setprio','s_sleep')):
        d['w']=set(R[0]); d['r']=set().union(*R[1:]) if len(R)>1 else set()
        if 'saveexec' in op: d['w']|={('s','exec')}
    elif op.startswith('s_cmp'): d['r']=set().union(*R)
    return d

def need(p,c):
    n=0
    vw={x for x in p['w'] if x[0]!='s'}; sw={x for x in p['w'] if x[0]=='s'}
    if p['kind']=='valu':
        if c['kind']=='mfma' and vw&c['r']: n=max(n,2)
        if c['kind']=='valu' and (c['dpp'] or c['op'].startswith('v_permlane')) and vw&c['r']: n=max(n,2)
        if p.get('trans') and c['kind'] in('valu','vmem','ds','mfma') and vw&c['r']: n=max(n,1)
        if c['op'].startswith(('v_readfirstlane','v_readlane')) and vw&c['r']: n=max(n,1)
        if sw&c['r']:
            n=max(n,5 if c['kind']=='vmem' else (2 if c['kind'] in('valu','mfma') else 1))
        if ('s','exec') in sw and c['kind']=='valu' and c['dpp']: n=max(n,5)
    if p['kind']=='mfma':
        if c['kind']=='mfma':
            if vw&c['ab']: n=max(n,9)
            elif vw&c['c'] and p['w']!=c['w']: n=max(n,9)
            elif vw&c['c']: n=max(n,0)
        elif vw&(c['r']|c['w']): n=max(n,9)
        if c['kind']=='valu' and (p['c']&c['w']) : n=max(n,9)
        if c['kind'] in('valu','ds','vmem') and (p['ab']&c['w']): n=max(n,0)
    if p['kind']=='s':
        if ('s','m0') in sw and c['kind']=='vmem' and c['lds']: n=max(n,1)
        if ('s','exec') in sw and c['kind']=='valu' and c['dpp']: n=max(n,5)
    if p.get('sd') and c['kind']=='valu' and p['sd']&c['w']: n=max(n,2)
    return n

def fix_hazards(L):
    out=[]; hist=[]
    for ln in L:
        c=parse(ln)
        if c is None:
            out.append(ln); continue
        dist=0; req=0
        for p,ws in reversed(hist[-12:]):
            r=need(p,c)-dist
            if r>req: req=r
            dist+=ws
        if req>0:
            out.append(f"s_nop {req-1}")
            hist.append((parse("s_nop 0"),req))
        out.append(ln)
        ws=1
        if c['op']=='s_nop': ws=int(ln.split()[1])+1
        hist.append((c,ws))
    return out

def merge(main, side, ratio):
    out=[]; i=0; acc=0.0
    for ln in main:
        out.append(ln)
        if ln.startswith('v_mfma'):
            acc+=ratio
            while acc>=1 and i<len(side):
                out.append(side[i]); i+=1; acc-=1
    out+=side[i:]
    return out

_need0=need
def need(p,c):
    n=_need0(p,c)
    if p['op'].startswith('v_dot2') and (p['w']&(c['r']|c['w'])):
        if not (c['op']==p['op'] and c['w']==p['w']): n=max(n,3)
    return n

def resolve_waits(L):
    out=[]; V=[]; D=[]; vdone=-1; ddone=-1
    for ln in L:
        tag=None
        m=re.search(r'#(\S+)',ln)
        if m: tag=m.group(1)
        op=ln.split()[0]
        if op in('WAITV','WAITL'):
            Q=V if op=='WAITV' else D
            t=ln.split()[1]
            idx=[i for i,x in enumerate(Q) if x==t]
            assert idx, ln
            i=idx[-1]; mx=63 if op=='WAITV' else 15
            if i<=(vdone if op=='WAITV' else ddone): continue
            n=min(len(Q)-1-i,mx)
            if op=='WAITV': out.append(f"s_waitcnt vmcnt({n})"); vdone=len(Q)-1-n
            else: out.append(f"s_waitcnt lgkmcnt({n})"); ddone=len(Q)-1-n
            continue
        if op=='s_waitcnt':
            if 'vmcnt(0)' in ln: vdone=len(V)-1
            if 'lgkmcnt(0)' in ln: ddone=len(D)-1
        if tag!='nocount':
            if op.startswith(('buffer_','global_')): V.append(tag)
            elif op.startswith('ds_'): D.append(tag)
        out.append(ln)
    return out
```

```python
def phase2(A,stamp,G):
    globals().update({k:v for k,v in G.items() if not k.startswith('__')})
    sV=sW; sLB=9
    ACC=64; HR=128; NH=8
    A(f"s_mul_i32 s{sLB}, s{sV}, 40960")
    for m in range(4):
        A(f"v_add_u32 v{4+m}, {4*m}, v3\nv_xor_b32 v{4+m}, v{4+m}, v2\nv_lshlrev_b32 v{4+m}, 4, v{4+m}")
        A(f"v_lshl_add_u32 v{9+m}, v2, 8, v{4+m}\nv_add_u32 v{9+m}, s{sLB}, v{9+m}\nv_lshl_add_u32 v{4+m}, v3, 10, v{4+m}")
    A("v_lshrrev_b32 v21, 3, v1\nv_and_b32 v22, 6, v21\nv_and_b32 v8, 7, v1\nv_xor_b32 v8, v8, v22\nv_lshlrev_b32 v8, 4, v8\nv_lshl_add_u32 v8, v21, 10, v8")
    A(f"v_lshrrev_b32 v21, 2, v1\nv_bfe_u32 v22, v1, 3, 2\nv_and_b32 v23, 3, v1\nv_lshlrev_b32 v23, 3, v23\nv_lshl_add_u32 v23, v21, 7, v23\nv_add_u32 v23, s{sLB}, v23")
    for dt in range(4): A(f"v_xor_b32 v21, {dt}, v22\nv_lshl_add_u32 v{13+dt}, v21, 5, v23")
    A(f"s_and_b32 s10, s{sV}, 1\ns_xor_b32 s11, s10, 1\nv_lshlrev_b32 v21, 4, v1")
    A(f"s_lshl_b32 s14, s10, 10\nv_add_u32 v17, s14, v21\ns_lshl_b32 s14, s11, 10\nv_add_u32 v18, s14, v21\ns_lshl_b32 s14, s10, 3\nv_add_u32 v19, s14, v21\ns_lshl_b32 s14, s11, 3\nv_add_u32 v20, s14, v21")
    A("s_barrier")
    A(f"s_lshl_b32 s14, s{sCN}, 16\ns_lshl_b32 s15, s{sV}, 8\ns_add_u32 s14, s14, s15\ns_mov_b32 m0, s{sLB}")
    for im in range(2):
        for n in range(16):
            A(f"s_add_u32 s15, s14, {4096*n}\nbuffer_load_dwordx4 v{4+(n&3)}, {S4(SCI if im else SCR)}, s15 offen lds ; #c\ns_add_u32 m0, m0, 1024")
    F=[]
    for gi in range(4):
        for a in range(3): F.append((112*gi+32*a,112*gi+32*a+16,('p',gi,a)))
        if gi&1: F.append((112*(gi-1)+96,112*gi+96,('o',gi-1)))
    A(f"s_mul_i32 s14, s{sV}, {448*1024}\ns_lshl_b32 s15, s{sCN}, 7\ns_add_u32 s14, s14, s15")
    def w2dma(k,slot):
        A(f"s_add_u32 m0, s{sLB}, {4096*slot}")
        for h in range(2):
            for e in range(2):
                A(f"s_add_u32 s15, s14, {(F[k][h]+8*e)*1024}\nbuffer_load_dwordx4 v8, {S4(SW2)}, s15 offen lds ; #w{k}")
                if h*2+e<3: A("s_add_u32 m0, m0, 1024")
    def w2read(k,slot,dst,dts=range(4)):
        for dt in dts:
            for h in range(2): A(f"ds_read_b64_tr_b16 {r2('a',dst+4*dt+2*h)}, v{13+dt} offset:{4096*slot+2048*h} ; #r{k}_{dt}")
    w2dma(0,8); w2dma(1,9)
    A(f"WAITV hs\nv_mov_b32 v22, s{sTAG}\nv_mov_b32 v23, s{sTAG+1}\nv_mov_b32 v21, 0\nbuffer_store_dwordx2 v[22:23], v21, {S4(SWS)}, s13 offen sc1 ; #fl")
    A(f"s_lshl_b32 s15, s{sR}, 6\ns_lshr_b32 s50, s{sV}, 1\ns_lshl_b32 s51, s50, 5\ns_add_u32 s15, s15, s51\ns_add_u32 s15, s15, s10\nv_lshl_add_u32 v21, v2, 1, s15")
    A(f"s_lshl_b32 s15, s{sCN}, 7\nv_lshl_add_u32 v41, v3, 3, s15\nv_lshl_add_u32 v40, v21, 10, v41")
    for dt in range(4):
        A(f"buffer_load_dwordx2 {r2('v',24+2*dt)}, v40, {S4(SX)}, 0 offen offset:{32*dt} ; #ep\nglobal_load_dwordx2 {r2('v',32+2*dt)}, v41, s[32:33] offset:{32*dt} ; #ep\nglobal_load_dwordx2 {r2('v',44+2*dt)}, v41, s[42:43] offset:{32*dt} ; #ep")
    A("v_lshlrev_b32 v40, 1, v40\nWAITV w1")
    for gi in range(4):
        for im in range(2):
            for dt in range(4): A(f"ds_read_b128 {r4('a',(gi*2+im)*16+4*dt)}, v{9+gi} offset:{16384*im+4096*dt} ; #cr")
    w2read(0,8,128); w2read(1,9,144)
    A("s_waitcnt lgkmcnt(0)")
    for k in range(2,12): w2dma(k,k-2)
    A("WAITV w3"); w2read(2,0,160); w2read(3,1,176); A("s_waitcnt lgkmcnt(0)")
    w2dma(12,0); w2dma(13,1)
    stamp(9)
    A(f"s_lshl_b32 s15, s{sR}, 1\ns_add_u32 s96, s15, s50\ns_xor_b32 s97, s96, 1\ns_lshl_b32 s51, s{sV}, 2")
    A(f"s_lshl_b32 s96, s96, 4\ns_add_u32 s96, s96, s51\ns_mul_i32 s96, s96, {BLK}\ns_lshl_b32 s97, s97, 4\ns_add_u32 s97, s97, s51\ns_mul_i32 s97, s97, {BLK}")
    A(f"s_lshl_b32 s15, s15, 4\ns_add_u32 s15, s15, s51\ns_lshl_b32 s15, s15, 7\ns_add_u32 s15, s15, {FOFF}\nv_bfe_u32 v21, v1, 2, 1\nv_and_b32 v22, 3, v1\nv_lshl_add_u32 v21, v21, 4, v22\nv_lshlrev_b32 v21, 7, v21\ns_mov_b32 s51, 0\nLp2:")
    A(f"buffer_load_dwordx2 v[22:23], v21, {S4(SWS)}, s15 offen sc1 ; #pf\ns_waitcnt vmcnt(0)\nv_xor_b32 v22, s{sTAG}, v22\nv_xor_b32 v23, s{sTAG+1}, v23\nv_or_b32 v22, v22, v23\nv_cmp_ne_u32 vcc, 0, v22")
    A("s_cmp_eq_u64 vcc, 0\ns_cbranch_scc1 Lp2ok\ns_add_u32 s51, s51, 1\ns_cmp_lt_u32 s51, 0x40000\ns_cbranch_scc1 Lp2\nLp2ok:")
    stamp(10)
    K=[('s',gi,im) for gi in range(4) for im in range(2)]+[f[2] for f in F]
    def hload(n):
        k=K[n]; d=HR+16*(n%NH)
        for wh in range(2):
            if k[0]=='o':
                for pr in range(2):
                    A(f"s_add_u32 s15, s{96+wh}, {(k[1]+pr)*BLK+10240}")
                    for tb in range(2): A(f"buffer_load_dwordx2 {r2('v',d+8*wh+4*tb+2*pr)}, v{19+tb}, {S4(SWS)}, s15 offen sc1 ; #h{n}")
            else:
                f=2*k[2] if k[0]=='s' else 4+2*k[2]
                A(f"s_add_u32 s15, s{96+wh}, {k[1]*BLK+1024*f}")
                for tb in range(2): A(f"buffer_load_dwordx4 {r4('v',d+8*wh+4*tb)}, v{17+tb}, {S4(SWS)}, s15 offen sc1 ; #h{n}")
    for n in range(NH): hload(n)
    A(f"v_lshlrev_b32 v21, 4, v2\ns_lshl_b32 s15, s10, 3\ns_add_u32 s15, s15, s96\ns_add_u32 s15, s15, 11264\nbuffer_load_dwordx2 v[52:53], v21, {S4(SWS)}, s15 offen sc1 ; #st")
    def wreg(n): return 16*n if n<12 else 192+16*(n&1)
    def slot(k): return k-2 if k<12 else k-12
    for n in range(22):
        if n==11: w2read(4,slot(4),wreg(12))
        A(f"WAITV h{n}")
        d=HR+16*(n%NH)
        for dt in range(4):
            if n>=12: A(f"WAITL r{n-8}_{dt}")
            for b in range(4):
                acc=r4('v',ACC+(b*4+dt)*4)
                A(f"{MF} {acc}, {r4('a',wreg(n)+4*dt)}, {r4('v',d+4*b)}, {'0' if n==0 else acc}")
            if 12<=n<21: w2read(n-7,slot(n-7),wreg(n+1),[dt])
        if n+NH<22: hload(n+NH)
    stamp(11)
    A(f"v_lshlrev_b32 v21, 4, v1\nv_add_u32 v22, s{sLB}, v21")
    for b in range(1,4):
        for dt in range(4): A(f"ds_write_b128 v22, {r4('v',ACC+(b*4+dt)*4)} offset:{4096*(b-1)+1024*dt} ; #rw")
    A("WAITV st")
    for dt in range(4):
        for src,dst in ((24,128),(32,132),(44,136)):
            for k in range(2): A(f"v_lshlrev_b32 v{dst+2*k}, 16, v{src+2*dt+k}\nv_and_b32 v{dst+2*k+1}, 0xffff0000, v{src+2*dt+k}")
        for r in range(4):
            a=ACC+4*dt+r
            A(f"v_add_f32 v{a}, v{a}, v{128+r}\nv_add_f32 v{a}, v{a}, v{136+r}\nv_sub_f32 v{128+r}, v{128+r}, v52")
            bf16r(A,128+r); A(f"v_mul_f32 v{128+r}, v{128+r}, v53"); bf16r(A,128+r)
            A(f"v_mul_f32 v{128+r}, v{128+r}, v{132+r}"); bf16r(A,128+r); A(f"v_add_f32 v{a}, v{a}, v{128+r}")
    A("s_waitcnt lgkmcnt(0)\ns_barrier")
    for b in range(1,4):
        A(f"s_xor_b32 s15, s{sV}, {b}\ns_mul_i32 s15, s15, 40960\nv_add_u32 v{22+b}, s15, v21")
    for dt in range(4):
        for b in range(1,4): A(f"ds_read_b128 {r4('v',128+16*b+4*dt)}, v{22+b} offset:{4096*(b-1)+1024*dt} ; #rr{dt}")
    for dt in range(4):
        A(f"WAITL rr{dt}")
        for b in range(1,4):
            for r in range(4): A(f"v_add_f32 v{ACC+4*dt+r}, v{ACC+4*dt+r}, v{128+16*b+4*dt+r}")
        A(f"buffer_store_dwordx4 {r4('v',ACC+4*dt)}, v40, {S4(SO)}, 0 offen offset:{64*dt} ; #o")
    stamp(12)
```

```python
import sys
from asmlib import *
NAME="parallel_sum__ssm_conv_s5__dense_activation_squared_relu__prompt"
BLK=11520; EOFF=16<<20; FOFF=17<<20
SPARE=29696
def r4(k,i): return f"{k}[{i}:{i+3}]"
def r2(k,i): return f"{k}[{i}:{i+1}]"
MF="v_mfma_f32_16x16x32_bf16"
sW,sC,sG,sR,sCN=3,4,5,6,7
sXB=8
SX,SB,SW1,SWS,SCR,SCI,SW2,SO,SD=52,56,60,64,68,72,76,80,84
sTAG=88
X0=128; SA0=96
def X(ks,tt): return X0+(ks*2+tt)*4
def SA(T,tt): return SA0+(T*2+tt)*4
def FA(t,tt): return (t*2+tt)*4
WF=64
ONES=44; CSA=48; CSB=52; ST=56
def bf16r(A,v,t=None):
    A(f"v_cvt_pk_bf16_f32 v{v}, v{v}, v{v}\nv_and_b32 v{v}, 0xffff0000, v{v}")
def cmul(A,dr,di,ar,ai,br,bi):
    A(f"v_mul_f32 v{dr}, v{ar}, v{br}\nv_mul_f32 v{di}, v{ar}, v{bi}\nv_fma_f32 v{dr}, -v{ai}, v{bi}, v{dr}\nv_fma_f32 v{di}, v{ai}, v{br}, v{di}")
def cfma(A,dr,di,ar,ai,br,bi,cr,ci):
    A(f"v_fma_f32 v{dr}, v{ar}, v{br}, v{cr}\nv_fma_f32 v{di}, v{ar}, v{bi}, v{ci}\nv_fma_f32 v{dr}, -v{ai}, v{bi}, v{dr}\nv_fma_f32 v{di}, v{ai}, v{br}, v{di}")
def cpow(A,dr,di,a,b,n,t):
    A(f"v_mul_f32 v{t}, {n}, v{a}\nv_mul_f32 v{di}, {n}, v{b}\nv_exp_f32 v{t}, v{t}\nv_fract_f32 v{di}, v{di}\nv_cos_f32 v{dr}, v{di}\nv_sin_f32 v{di}, v{di}\nv_mul_f32 v{dr}, v{t}, v{dr}\nv_mul_f32 v{di}, v{t}, v{di}")
def srd(A,d,p,n): A(f"s_mov_b32 s{d}, s{p}\ns_mov_b32 s{d+1}, s{p+1}\ns_mov_b32 s{d+2}, {n}\ns_mov_b32 s{d+3}, 0x20000")
def S4(d): return f"s[{d}:{d+3}]"
def w1loc(ks): return 32768*(ks%4)+8192+7168*(ks//4) if ks<12 else 131072+7168*(ks-12)

def gen(opt):
    A=Asm()
    TM=opt.get('time')
    def stamp(i):
        if TM: A(f"s_memtime s[{90}:{91}]\ns_waitcnt lgkmcnt(0)\nv_writelane_b32 v42, s90, {i}")
    A("s_load_dwordx16 s[16:31], s[0:1], 0\ns_load_dwordx16 s[32:47], s[0:1], 64\ns_load_dwordx2 s[48:49], s[0:1], 128")
    A("s_cmp_ge_u32 s2, 256\ns_cbranch_scc1 Lend")
    A(f"v_lshrrev_b32 v1, 6, v0\nv_readfirstlane_b32 s{sW}, v1\nv_and_b32 v1, 63, v0\nv_and_b32 v2, 15, v1\nv_lshrrev_b32 v3, 4, v1")
    A(f"s_and_b32 s9, s2, 7\ns_lshr_b32 s10, s2, 3")
    A(f"s_and_b32 s11, s9, 1\ns_lshl_b32 s11, s11, 3\ns_and_b32 s12, s10, 7\ns_add_u32 s{sC}, s11, s12")
    A(f"s_lshr_b32 s11, s9, 1\ns_lshl_b32 s11, s11, 2\ns_lshr_b32 s12, s10, 3\ns_add_u32 s{sG}, s11, s12")
    A(f"s_lshl_b32 s11, s9, 2\ns_and_b32 s12, s10, 3\ns_add_u32 s{sR}, s11, s12\ns_lshr_b32 s{sCN}, s10, 2")
    A(f"s_lshl_b32 s{sXB}, s{sW}, 15")
    if TM: A("v_mov_b32 v42, 0")
    A("s_waitcnt lgkmcnt(0)")
    stamp(0)
    srd(A,SX,16,2048*1024)
    A(f"v_and_b32 v60, 31, v1\ns_lshl_b32 s11, s{sG}, 5\nv_add_u32 v61, s11, v60\nv_lshlrev_b32 v61, 1, v61")
    A("global_load_ushort v64, v61, s[18:19] ; #sm\nglobal_load_ushort v65, v61, s[20:21] ; #sm\nglobal_load_ushort v66, v61, s[30:31] ; #sm")
    A(f"s_lshl_b32 s12, s{sC}, 17\ns_add_u32 s12, s12, s{sXB}\nv_lshlrev_b32 v62, 4, v1\ns_mov_b32 m0, s{sXB}")
    for j in range(16):
        A(f"v_xor_b32 v{128+j}, {16*j}, v62")
    for j in range(16):
        A(f"buffer_load_dwordx4 v{128+j}, {S4(SX)}, s12 offen lds ; #x\nbuffer_load_dwordx4 v{128+j}, {S4(SX)}, s12 offen offset:1024 lds ; #x")
        if j<15: A(f"s_add_u32 s12, s12, 2048\ns_add_u32 m0, m0, 2048")
    A(f"s_cmp_ge_u32 s{sW}, 2\ns_cselect_b32 s{SB}, s24, s22\ns_cselect_b32 s{SB+1}, s25, s23\ns_mov_b32 s{SB+2}, {512*1024}\ns_mov_b32 s{SB+3}, 0x20000")
    A(f"v_lshrrev_b32 v63, 5, v1")
    for n in range(8):
        A(f"v_add_u32 v4, {2*n}, v63\nv_xor_b32 v4, v4, v60\nv_lshlrev_b32 v4, 4, v4\nv_add_u32 v5, {8*(n>>1)+2*(n&1)}, v63\nv_lshl_add_u32 v{33+n}, v5, 10, v4")
    A(f"s_and_b32 s13, s{sW}, 1\ns_lshl_b32 s13, s13, 2\ns_add_u32 s13, s13, s11\ns_lshl_b32 s13, s13, 10")
    A(f"s_lshl_b32 s14, s{sW}, 13\ns_add_u32 m0, s14, 131072")
    for n in range(8):
        A(f"buffer_load_dwordx4 v{33+n}, {S4(SB)}, s13 offen lds ; #h0")
        if n<7: A("s_add_u32 m0, m0, 1024")
    srd(A,SW1,36,512*3584); srd(A,SWS,48,32<<20); srd(A,SCR,26,512*1024); srd(A,SCI,28,512*1024)
    srd(A,SW2,40,1792*1024); srd(A,SO,44,2048*2048); srd(A,SD,46,256)
    A(f"s_or_b32 s15, s2, s{sW}\ns_cmp_lg_u32 s15, 0\ns_cbranch_scc1 Lnotag")
    A(f"s_memrealtime s[{sTAG}:{sTAG+1}]\nv_mov_b32 v6, 0\ns_waitcnt lgkmcnt(0)\ns_bitset1_b32 s{sTAG+1}, 31\nv_mov_b32 v4, s{sTAG}\nv_mov_b32 v5, s{sTAG+1}")
    A(f"buffer_store_dwordx2 v[4:5], v6, {S4(SD)}, 0 offen sc1 ; #nocount\nLnotag:")
    for m in range(4):
        A(f"v_add_u32 v{4+m}, {4*m}, v3\nv_xor_b32 v{4+m}, v{4+m}, v2\nv_lshlrev_b32 v{4+m}, 4, v{4+m}")
        A(f"v_lshl_add_u32 v{8+m}, v2, 9, v{4+m}\nv_lshl_add_u32 v{4+m}, v2, 11, v{4+m}\nv_add_u32 v{4+m}, s{sXB}, v{4+m}")
        A(f"v_add_u32 v{12+m}, 0x10000, v{8+m}\nv_add_u32 v{8+m}, 0x20000, v{8+m}\nv_add_u32 v{16+m}, s14, v{8+m}")
    A("s_movk_i32 s15, 4682\ns_movk_i32 s50, 3584")
    for n in range(7):
        A(f"v_add_u32 v67, {64*n}, v1\nv_mul_u32_u24 v68, s15, v67\nv_lshrrev_b32 v68, 16, v68\nv_mul_u32_u24 v69, 14, v68\nv_sub_u32 v67, v67, v69")
        A(f"v_and_b32 v69, 12, v68\nv_lshlrev_b32 v69, 1, v69\nv_and_b32 v70, 3, v68\nv_add_u32 v69, v69, v70\nv_lshrrev_b32 v68, 4, v68\nv_lshl_add_u32 v69, v68, 2, v69")
        A(f"v_mul_u32_u24 v69, s50, v69\nv_lshl_add_u32 v{20+n}, v67, 4, v69")
    A(f"v_lshrrev_b32 v67, 2, v1\nv_mul_u32_u24 v67, 224, v67\nv_and_b32 v68, 3, v1\nv_lshl_add_u32 v27, v68, 3, v67\nv_add_u32 v28, 0x10000, v27\nv_add_u32 v29, 0x20000, v27")
    A(f"s_lshl_b32 s15, s{sW}, 5\nv_add_u32 v30, s15, v27\nv_add_u32 v31, s15, v28\nv_add_u32 v32, s15, v29")
    for i in range(4): A(f"v_mov_b32 v{ONES+i}, 0x3f803f80")
    A("WAITV sm\nv_lshlrev_b32 v64, 16, v64\nv_lshlrev_b32 v65, 16, v65\nv_lshlrev_b32 v66, 16, v66")
    A("v_mul_f32 v66, 0x3fb8aa3b, v66\nv_exp_f32 v66, v66"); bf16r(A,66)
    A("v_mul_f32 v80, v66, v64\nv_mul_f32 v81, v66, v65\nv_mul_f32 v80, 0x3fb8aa3b, v80\nv_mul_f32 v81, 0.15915494, v81")
    cpow(A,68,69,80,81,"1.0",67)
    A("v_mul_f32 v66, v64, v64\nv_fma_f32 v66, v65, v65, v66\nv_rcp_f32 v66, v66\nv_add_f32 v67, -1.0, v68\nv_add_f32 v66, v66, v66")
    A("v_mul_f32 v70, v67, v64\nv_fma_f32 v70, v69, v65, v70\nv_mul_f32 v71, v69, v64\nv_fma_f32 v71, -v67, v65, v71\nv_mul_f32 v70, v70, v66\nv_mul_f32 v71, v71, v66")
    for i,n in enumerate(["2.0","4.0","0x41000000","0x41800000"]): cpow(A,72+2*i,73+2*i,80,81,n,67)
    stamp(1)
    A("WAITV x")
    stamp(2)
    for ks in range(16):
        for tt in range(2):
            A(f"ds_read_b128 {r4('v',X(ks,tt))}, v{4+(ks&3)} offset:{256*(ks>>2)+1024*tt} ; #xr{ks}")
    A("s_waitcnt lgkmcnt(0)")
    A(f"s_add_u32 s13, s13, 512\ns_mov_b32 m0, s{sXB}")
    for n in range(8):
        A(f"buffer_load_dwordx4 v{33+n}, {S4(SB)}, s13 offen lds ; #h1\ns_add_u32 m0, m0, 1024")
    A(f"s_mul_i32 s12, s{sG}, 224\ns_mul_i32 s15, s{sW}, {32*3584}\ns_add_u32 s12, s12, s15")
    for i in range(3):
        for n in range(7):
            A(f"buffer_load_dwordx4 v{20+n}, {S4(SW1)}, s12 offen lds ; #w1{i}\ns_add_u32 m0, m0, 1024")
        A(f"s_add_u32 s12, s12, {4*32*3584}")
    A(f"v_mov_b32 v62, 0\nbuffer_load_dwordx2 v[82:83], v62, {S4(SD)}, 0 offen sc1 ; #tag")
    A(f"v_lshlrev_b32 v43, 2, v60\nv_add_u32 v43, s{sXB}, v43")
    for e in range(14): A(f"ds_write_b32 v43, v{68+e} offset:{SPARE+128*e} ; #tw")
    cpow(A,33,34,80,81,"0x42000000",67); cpow(A,35,36,80,81,"0x43000000",67); cpow(A,37,38,80,81,"0x43800000",67)
    A(f"s_lshl_b32 s15, s{sW}, 5\nv_cvt_f32_u32 v66, s15"); cpow(A,39,40,80,81,"v66",67)
    for i in range(8): A(f"v_mov_b32 v{64+i}, 0")
    for ks in range(16):
        for i in range(4):
            for tt in range(2):
                x=X(ks,tt)+i
                A(f"v_dot2c_f32_bf16 v{64+tt*4+(i&1)}, v{x}, v{ONES}\nv_dot2c_f32_bf16 v{66+tt*4+(i&1)}, v{x}, v{x}")
    for k in range(4): A(f"v_add_f32 v{64+2*k}, v{64+2*k}, v{65+2*k}")
    for sw in ("v_permlane32_swap_b32","v_permlane16_swap_b32"):
        for k in range(4): A(f"v_mov_b32 v{65+2*k}, v{64+2*k}")
        for k in range(4): A(f"{sw} v{64+2*k}, v{65+2*k}")
        for k in range(4): A(f"v_add_f32 v{64+2*k}, v{64+2*k}, v{65+2*k}")
    for tt in range(2):
        s,q,m,rs=64+4*tt,66+4*tt,ST+2*tt,ST+2*tt+1
        A(f"v_mul_f32 v{m}, 0x3b000000, v{s}\nv_mul_f32 v{q}, 0x3b000000, v{q}\nv_fma_f32 v{q}, -v{m}, v{m}, v{q}\nv_max_f32 v{q}, 0, v{q}")
        bf16r(A,m); bf16r(A,q); A(f"v_add_f32 v{q}, 0x3727c5ac, v{q}"); bf16r(A,q)
        A(f"v_sqrt_f32 v{q}, v{q}"); bf16r(A,q); A(f"v_rcp_f32 v{rs}, v{q}")
    stamp(3)
    def ssm_read(ks,T):
        buf=WF+((ks&1)*5+T)*4; kk=ks&7; m=kk&3; off=256*(kk>>2)
        if T==4: base=16+m
        elif ks<8: base=8+m; off+=8192*T
        else: base=(8 if T<2 else 12)+m; off+=32768*(T&1)
        A(f"ds_read_b128 {r4('a',buf)}, v{base} offset:{off} ; #s{ks}_{T}")
    for half in range(2):
        A(f"WAITV h{half}\ns_barrier")
        if half==1:
            A(f"s_mul_i32 s15, s{sW}, 7168\ns_add_u32 m0, s15, 131072")
            for n in range(7):
                A(f"buffer_load_dwordx4 v{20+n}, {S4(SW1)}, s12 offen lds ; #w13\ns_add_u32 m0, m0, 1024")
            for m in range(4): A(f"v_add_u32 v{8+m}, 0xfffe0000, v{8+m}\nv_add_u32 v{16+m}, s{sXB}, v{8+m}")
        for T in range(5): ssm_read(8*half,T)
        for ks in range(8*half,8*half+8):
            for T in range(5):
                buf=WF+((ks&1)*5+T)*4
                A(f"WAITL s{ks}_{T}")
                if T<4:
                    for tt in range(2):
                        c="0" if ks==0 else r4('v',SA(T,tt))
                        A(f"{MF} {r4('v',SA(T,tt))}, {r4('a',buf)}, {r4('v',X(ks,tt))}, {c}")
                else:
                    A(f"{MF} {r4('v',CSA)}, {r4('a',buf)}, {r4('v',ONES)}, {'0' if ks==0 else r4('v',CSA)}")
                if (ks&7)<7: ssm_read(ks+1,T)
    stamp(4)
    A(f"v_lshlrev_b32 v61, 4, v3\nv_add_u32 v62, s{sXB}, v61\nds_write_b128 v62, {r4('v',CSA)} offset:{SPARE+1792} ; #cw")
    A("s_waitcnt lgkmcnt(0)\nWAITV w12\ns_barrier")
    A("v_add_u32 v63, 0x10000, v61")
    for T in range(4): A(f"ds_read_b128 {r4('v',64+4*T)}, v{61 if T<2 else 63} offset:{32768*(T&1)+SPARE+1792} ; #cr")
    A(f"v_lshlrev_b32 v60, 5, v3\nv_add_u32 v60, s{sXB}, v60")
    def tread(dst,e,tag):
        for c in range(2):
            for h in range(2): A(f"ds_read_b128 {r4('v',dst+8*c+4*h)}, v60 offset:{SPARE+128*(e+c)+16*h} ; #{tag}")
    A(f"WAITV tag\ns_mov_b32 s15, 0\nLtag:\nv_readfirstlane_b32 s{sTAG}, v82\nv_readfirstlane_b32 s{sTAG+1}, v83\ns_cmp_lg_u32 s{sTAG+1}, 0\ns_cbranch_scc1 Ltagok")
    A(f"v_mov_b32 v84, 0\nbuffer_load_dwordx2 v[82:83], v84, {S4(SD)}, 0 offen sc1 ; #nocount\ns_add_u32 s15, s15, 1\ns_waitcnt vmcnt(0)\ns_cmp_lt_u32 s15, 0x40000\ns_cbranch_scc1 Ltag\nLtagok:")
    tread(80,2,'G')
    A("WAITL cr")
    def U(tt,i,c): return SA(2*c+(i>>2),tt)+(i&3)
    for T in range(4):
        for tt in range(2):
            for r in range(4):
                a=SA(T,tt)+r
                A(f"v_fma_f32 v{a}, -v{ST+2*tt}, v{64+4*T+r}, v{a}\nv_mul_f32 v{a}, v{ST+2*tt+1}, v{a}")
    tread(64,0,'lam')
    A("WAITL G")
    for tt in range(2):
        for i in range(8):
            ur,ui=U(tt,i,0),U(tt,i,1); t=4+(i&3)
            A(f"v_mul_f32 v{t}, v{ur}, v{88+i}\nv_mul_f32 v{ur}, v{ur}, v{80+i}\nv_fma_f32 v{ur}, -v{ui}, v{88+i}, v{ur}\nv_fma_f32 v{ui}, v{ui}, v{80+i}, v{t}")
    tread(80,4,'p0')
    A("WAITL lam")
    for i in range(8): cfma(A,U(1,i,0),U(1,i,1),U(0,i,0),U(0,i,1),64+i,72+i,U(1,i,0),U(1,i,1))
    for st in range(4):
        P=80 if st%2==0 else 64
        if st<3: tread(64 if st%2==0 else 80,6+2*st,f'p{st+1}')
        else: tread(80,12,'ab')
        A(f"WAITL p{st}")
        dpp=f"row_shr:{1<<st} row_mask:0xf bank_mask:0xf bound_ctrl:0"
        for i0 in (0,4):
            I=range(i0,i0+4)
            for i in I: A(f"v_mov_b32_dpp v{4+(i&3)}, v{U(1,i,0)} {dpp}\nv_mov_b32_dpp v{8+(i&3)}, v{U(1,i,1)} {dpp}")
            for i in I: cfma(A,U(1,i,0),U(1,i,1),4+(i&3),8+(i&3),P+i,P+8+i,U(1,i,0),U(1,i,1))
    A("v_cmp_eq_u32 vcc, 15, v2\ns_and_saveexec_b64 s[92:93], vcc")
    for c in range(2):
        for h in range(2): A(f"ds_write_b128 v60, {r4('v',SA(2*c+h,1))} offset:{SPARE+2048+128*c+16*h} ; #ww")
    A("s_mov_b64 exec, s[92:93]\ns_waitcnt lgkmcnt(0)\ns_barrier")
    A(f"v_and_b32 v61, 31, v1\nv_lshlrev_b32 v61, 2, v61\nv_add_u32 v63, 0x10000, v61")
    for w in range(4):
        for c in range(2): A(f"ds_read_b32 v{4+2*w+c}, v{61 if w<2 else 63} offset:{32768*(w&1)+SPARE+2048+128*c} ; #wr")
    A("v_lshl_add_u32 v62, v2, 1, 2\nv_cvt_f32_u32 v62, v62")
    for i in range(8): cpow(A,64+i,72+i,80+i,88+i,"v62",12+(i&3))
    A("WAITL wr\nv_mov_b32 v16, 0\nv_mov_b32 v17, 0")
    for w in range(3):
        A(f"s_cmp_le_u32 s{sW}, {w}\ns_cbranch_scc1 LT")
        cfma(A,4+2*w,5+2*w,16,17,33,34,4+2*w,5+2*w); A(f"v_mov_b32 v16, v{4+2*w}\nv_mov_b32 v17, v{5+2*w}")
    cfma(A,12,13,16,17,33,34,10,11)
    A(f"v_mov_b32 v14, s{sTAG}\nv_mov_b32 v15, s{sTAG+1}\ns_lshl_b32 s15, s{sG}, 4\ns_add_u32 s15, s15, s{sC}\ns_lshl_b32 s15, s15, 9\ns_add_u32 s15, s15, {EOFF}\nv_lshlrev_b32 v63, 2, v61")
    A(f"buffer_store_dwordx4 v[12:15], v63, {S4(SWS)}, s15 offen sc1 ; #nocount\nLT:")
    A(f"s_mul_i32 s15, s{sG}, 224\nv_lshl_add_u32 v62, v3, 3, s15")
    for t in range(7): A(f"global_load_dwordx2 {r2('v',80+2*t)}, v62, s[38:39] offset:{32*t} ; #b1")
    stamp(5)
    def ffn_read(ks,t):
        buf=WF+((ks&1)*9+t)*4; loc=w1loc(ks); hi=loc>>16; lo=loc&0xffff
        if lo+7168>65535+1: raise Exception("off")
        base=(27 if t<7 else 30)+hi; o=lo+(32*t if t<7 else 128*(t-7))
        for h in range(2): A(f"ds_read_b64_tr_b16 {r2('a',buf+2*h)}, v{base} offset:{o+3584*h} ; #f{ks}_{t}")
    for k0,k1 in ((0,12),(12,16)):
        if k0: A("WAITV w13\ns_barrier")
        for t in range(9): ffn_read(k0,t)
        for ks in range(k0,k1):
            for t in range(9):
                buf=WF+((ks&1)*9+t)*4
                A(f"WAITL f{ks}_{t}")
                if t<7:
                    for tt in range(2):
                        c="0" if ks==0 else r4('a',FA(t,tt))
                        A(f"{MF} {r4('a',FA(t,tt))}, {r4('a',buf)}, {r4('v',X(ks,tt))}, {c}")
                else:
                    cs=CSA if t==7 else CSB
                    A(f"{MF} {r4('v',cs)}, {r4('a',buf)}, {r4('v',ONES)}, {'0' if ks==0 else r4('v',cs)}")
                if ks+1<k1: ffn_read(ks+1,t)
    stamp(6)
    A(f"v_lshlrev_b32 v61, 4, v3\nv_add_u32 v62, s{sXB}, v61\nds_write_b128 v62, {r4('v',CSA)} offset:{SPARE+2304} ; #cw\nds_write_b128 v62, {r4('v',CSB)} offset:{SPARE+2368} ; #cw")
    A(f"v_lshrrev_b32 v4, 5, v1\nv_sub_u32 v4, s{sC}, v4\nv_and_b32 v5, 31, v1\nv_lshlrev_b32 v5, 4, v5\ns_lshl_b32 s15, s{sG}, 13\ns_add_u32 s15, s15, {EOFF}\nv_mov_b32 v7, 0x7f000000")
    for i in range(8):
        A(f"v_add_u32 v6, {-1-2*i}, v4\nv_cmp_le_i32 vcc, 0, v6\nv_lshl_add_u32 v6, v6, 9, v5\nv_cndmask_b32 v{160+i}, v7, v6, vcc")
    A("s_mov_b32 s51, 0\nLlb:")
    for i in range(8): A(f"buffer_load_dwordx4 {r4('v',128+4*i)}, v{160+i}, {S4(SWS)}, s15 offen sc1 ; #lb")
    A("s_waitcnt vmcnt(0)\ns_mov_b64 s[92:93], 0")
    for i in range(8):
        A(f"v_xor_b32 v6, s{sTAG}, v{130+4*i}\nv_xor_b32 v8, s{sTAG+1}, v{131+4*i}\nv_or_b32 v6, v6, v8\nv_cmp_ne_u32 vcc, 0, v6\nv_cmp_ne_u32 s[94:95], v7, v{160+i}\ns_and_b64 vcc, vcc, s[94:95]\ns_or_b64 s[92:93], s[92:93], vcc")
    A("s_cmp_eq_u64 s[92:93], 0\ns_cbranch_scc1 Llbok\ns_add_u32 s51, s51, 1\ns_cmp_lt_u32 s51, 0x40000\ns_cbranch_scc1 Llb\nLlbok:")
    for i in range(6,-1,-1): cfma(A,128+4*i,129+4*i,132+4*i,133+4*i,37,38,128+4*i,129+4*i)
    A("v_mov_b32 v130, v128\nv_mov_b32 v131, v129\nv_permlane32_swap_b32 v128, v130\nv_permlane32_swap_b32 v129, v131")
    cfma(A,128,129,130,131,35,36,128,129); cfma(A,16,17,128,129,39,40,16,17)
    A(f"ds_write_b32 v43, v16 offset:{SPARE+2560} ; #sw\nds_write_b32 v43, v17 offset:{SPARE+2688} ; #sw\ns_waitcnt lgkmcnt(0)\ns_barrier")
    stamp(7)
    tread(128,20,'S'); tread(144,0,'lam2')
    A("v_add_u32 v63, 0x10000, v61")
    for t in range(7): A(f"ds_read_b128 {r4('v',160+4*t)}, v{61 if (t&3)<2 else 63} offset:{32768*(t&1)+SPARE+2304+64*(t>>2)} ; #cr2")
    A("WAITL S")
    for i in range(8): cfma(A,U(1,i,0),U(1,i,1),128+i,136+i,64+i,72+i,U(1,i,0),U(1,i,1))
    for i in range(8):
        for c in range(2): A(f"v_mov_b32_dpp v{128+8*c+i}, v{U(1,i,c)} row_shr:1 row_mask:0xf bank_mask:0xf")
    A("WAITL lam2")
    for i in range(8): cfma(A,U(0,i,0),U(0,i,1),128+i,136+i,144+i,152+i,U(0,i,0),U(0,i,1))
    A(f"s_lshl_b32 s15, s{sC}, 2\ns_add_u32 s15, s15, s{sW}\ns_lshl_b32 s15, s15, 4\ns_add_u32 s15, s15, s{sG}\ns_mul_i32 s12, s15, {BLK}\ns_lshl_b32 s13, s15, 7\ns_add_u32 s13, s13, {FOFF}\nv_lshlrev_b32 v62, 4, v1")
    for c in range(2):
        for tt in range(2):
            d=192+8*c+4*tt; n='-' if c else ''
            for k in range(4): A(f"v_cvt_pk_bf16_f32 v{d+k}, {n}v{U(tt,2*k,c)}, {n}v{U(tt,2*k+1,c)}")
            A(f"buffer_store_dwordx4 {r4('v',d)}, v62, {S4(SWS)}, s12 offen offset:{1024*(2*c+tt)} sc1 ; #hs")
    A("WAITV b1\nWAITL cr2\ns_add_u32 s12, s12, 4096")
    for t in range(7):
        for k in range(2): A(f"v_and_b32 v{5+2*k}, 0xffff0000, v{80+2*t+k}\nv_lshlrev_b32 v{4+2*k}, 16, v{80+2*t+k}")
        for tt in range(2):
            z=8+4*tt
            for r in range(4): A(f"v_accvgpr_read_b32 v{z+r}, a{FA(t,tt)+r}")
            for r in range(4): A(f"v_fma_f32 v{z+r}, -v{ST+2*tt}, v{160+4*t+r}, v{z+r}")
            for r in range(4): A(f"v_fma_f32 v{z+r}, v{z+r}, v{ST+2*tt+1}, v{4+r}")
            for r in range(4): A(f"v_max_f32 v{z+r}, 0, v{z+r}")
            for r in range(4): A(f"v_mul_f32 v{z+r}, v{z+r}, v{z+r}")
            d=208+8*(t>>1)+4*tt+2*(t&1) if t<6 else 232+2*tt
            A(f"v_cvt_pk_bf16_f32 v{d}, v{z}, v{z+1}\nv_cvt_pk_bf16_f32 v{d+1}, v{z+2}, v{z+3}")
        if t&1:
            for tt in range(2): A(f"buffer_store_dwordx4 {r4('v',208+8*(t>>1)+4*tt)}, v62, {S4(SWS)}, s12 offen offset:{1024*tt} sc1 ; #hs")
            A("s_add_u32 s12, s12, 2048")
    A(f"buffer_store_dwordx4 v[232:235], v62, {S4(SWS)}, s12 offen sc1 ; #hs\nv_lshlrev_b32 v63, 4, v2\nbuffer_store_dwordx4 {r4('v',ST)}, v63, {S4(SWS)}, s12 offen offset:1024 sc1 ; #hs")
    stamp(8)
    from gen2 import phase2
    phase2(A,stamp,globals())
    if TM:
        A(f"s_lshl_b32 s15, s2, 2\ns_add_u32 s15, s15, s{sW}\ns_lshl_b32 s15, s15, 8\ns_add_u32 s15, s15, {24<<20}\nv_lshlrev_b32 v1, 2, v1\nbuffer_store_dword v42, v1, {S4(SWS)}, s15 offen\ns_waitcnt vmcnt(0)")
    A("Lend:\ns_endpgm")
    L=fix_hazards(resolve_waits(A.L))
    hdr=[l for l in open(f"cdna_kernels/{NAME}.s.ref").read().split("\n") if l.startswith(";") and "@launch" not in l]
    out="\n".join(hdr)+"\n; @launch grid=(256,1,1) block=(256,1,1) lds=163840\n"
    out+=f'.amdgcn_target "amdgcn-amd-amdhsa--gfx950"\n.text\n.globl {NAME}_kernel\n.p2align 8\n.type {NAME}_kernel,@function\n{NAME}_kernel:\n'
    out+="\n".join(("" if l.endswith(":") else "  ")+l.split(';')[0].rstrip() for l in L)
    out+=f'\n.section .rodata,"a"\n.p2align 6\n.amdhsa_kernel {NAME}_kernel\n  .amdhsa_next_free_vgpr 512\n  .amdhsa_next_free_sgpr 102\n  .amdhsa_accum_offset 256\n  .amdhsa_group_segment_fixed_size 0\n  .amdhsa_kernarg_size 136\n  .amdhsa_user_sgpr_count 2\n  .amdhsa_user_sgpr_kernarg_segment_ptr 1\n  .amdhsa_system_sgpr_workgroup_id_x 1\n.end_amdhsa_kernel\n'
    return out
if __name__=="__main__":
    opt={}
    for a in sys.argv[2:]:
        k,_,v=a.partition('='); opt[k]=int(v) if v else 1
    open(sys.argv[1],"w").write(gen(opt))
```
